```python
import torch

def _softmax(x, axis=-1):
    return torch.softmax(x, dim=axis)
def _gelu(x):
    return torch.nn.functional.gelu(x, approximate="tanh")
def _silu(x):
    return torch.nn.functional.silu(x)
def _sigmoid(x):
    return torch.sigmoid(x)
def _layernorm(x, axis=-1, eps=1e-5):
    m = x.mean(dim=axis, keepdim=True)
    v = x.var(dim=axis, keepdim=True, unbiased=False)
    return (x - m) / torch.sqrt(v + eps)
def _scatter_add(tgt, idx, src, axis=0):
    return tgt.clone().index_add_(axis, idx, src)
def _segment_sum(src, seg, n):
    out = torch.zeros((n,) + src.shape[1:], dtype=src.dtype)
    return out.index_add_(0, seg, src)
def _pad(x, pw):
    flat = tuple(v for pair in reversed(pw) for v in pair)
    return torch.nn.functional.pad(x, flat)

kernel_name = 'recurrent_scan__grouped_kv_mqa__glu_gated_swiglu__prompt'

def setup_inputs():

    _w = (lambda a: (lambda t: t.to(torch.bfloat16) if t.is_floating_point() else t)(torch.as_tensor(a)))
    def _A_setup():
        B, S, D, H = 1, 2048, 576, 32
        Dh = D // H
        return {
            "x": _w((lambda *s: torch.randn(*s, dtype=torch.bfloat16) * 0.05)(B, S, D)),
            "wq": _w((lambda *s: torch.randn(*s, dtype=torch.bfloat16) * 0.2)(D, H * Dh)),
            "wk": _w((lambda *s: torch.randn(*s, dtype=torch.bfloat16) * 0.2)(D, Dh)),
            "wv": _w((lambda *s: torch.randn(*s, dtype=torch.bfloat16) * 0.2)(D, Dh)),
            "wo": _w((lambda *s: torch.randn(*s, dtype=torch.bfloat16) * 0.2)(H * Dh, D)),
        }
    _A_in = _A_setup()

    def _B_setup():
        B, S, D, F = 1, 2048, 576, 4608
        return {
            "x": _w((lambda *s: torch.randn(*s, dtype=torch.bfloat16) * 0.05)(B, S, D)),
            "w1": _w((lambda *s: torch.randn(*s, dtype=torch.bfloat16) * 0.1)(D, F) * (2.0 / D) ** 0.5),
            "w3": _w((lambda *s: torch.randn(*s, dtype=torch.bfloat16) * 0.1)(D, F) * (2.0 / D) ** 0.5),
            "w2": _w((lambda *s: torch.randn(*s, dtype=torch.bfloat16) * 0.1)(F, D) * (2.0 / F) ** 0.5),
        }
    _B_in = _B_setup()

    return {
        "A_x": _A_in["x"],
        "A_wq": _A_in["wq"],
        "A_wk": _A_in["wk"],
        "A_wv": _A_in["wv"],
        "A_wo": _A_in["wo"],
        "B_x": _B_in["x"],
        "B_w1": _B_in["w1"],
        "B_w3": _B_in["w3"],
        "B_w2": _B_in["w2"],
    }

def reference(A_x, A_wq, A_wk, A_wv, A_wo, B_x, B_w1, B_w3, B_w2):
    def _A_ref(x, wq, wk, wv, wo):
        B, S, D = x.shape
        H = 32
        Dh = D // H
        q = (lambda x, *d: x.permute(*d))((x @ wq).reshape(B, S, H, Dh), 0, 2, 1, 3)
        k = x @ wk
        v = x @ wv
        scores = torch.einsum("bhqd,bkd->bhqk", q, k) * (Dh ** -0.5)
        p = _softmax(scores, axis=-1)
        o = torch.einsum("bhqk,bkd->bhqd", p, v)
        return (lambda x, *d: x.permute(*d))(o, 0, 2, 1, 3).reshape(B, S, H * Dh) @ wo

    def _B_ref(x, w1, w3, w2):
        gate = torch.einsum("bsd,df->bsf", x, w1)
        up = torch.einsum("bsd,df->bsf", x, w3)
        h = _silu(gate) * up
        out = torch.einsum("bsf,fd->bsd", h, w2)
        return out

    x = A_x
    xn = _layernorm(x, axis=-1)
    s = _A_ref(xn, A_wq, A_wk, A_wv, A_wo)
    g = _silu(_B_ref(xn, B_w1, B_w3, B_w2))
    return x + s * g
```

```python
import re, sys

def regs_of(tok):
    tok = tok.strip()
    tok = re.sub(r'^-|^abs\(|\)$|^\|', '', tok).strip('|')
    m = re.fullmatch(r'([vsa])(\d+)', tok)
    if m: return [(m.group(1), int(m.group(2)))]
    m = re.fullmatch(r'([vsa])\[(\d+):(\d+)\]', tok)
    if m: return [(m.group(1), i) for i in range(int(m.group(2)), int(m.group(3)) + 1)]
    if tok == 'vcc': return [('s', 106), ('s', 107)]
    if tok == 'vcc_lo': return [('s', 106)]
    if tok == 'vcc_hi': return [('s', 107)]
    if tok == 'exec': return [('s', 126), ('s', 127)]
    if tok == 'exec_lo': return [('s', 126)]
    if tok == 'exec_hi': return [('s', 127)]
    if tok == 'm0': return [('s', 124)]
    return []

TRANS = ('v_exp_', 'v_log_', 'v_rcp_', 'v_rsq_', 'v_sqrt_', 'v_sin_', 'v_cos_')

class I:
    def __init__(self, text, line):
        self.text = text; self.line = line
        parts = text.split(None, 1)
        self.op = parts[0]
        rest = parts[1] if len(parts) > 1 else ''
        ops = [o.strip() for o in rest.split(',')] if rest else []
        clean = []
        for o in ops:
            clean.append(o.split()[0] if o else o)
        self.ops = clean
        self.rest = rest
        op = self.op
        self.ws = 1
        if op == 's_nop': self.ws = int(clean[0], 0) + 1
        self.mfma = op.startswith('v_mfma') or op.startswith('v_smfmac')
        self.smf = op.startswith('v_smfmac')
        self.dot = op.startswith('v_dot')
        self.valu = op.startswith('v_') and not self.mfma
        self.trans = op.startswith(TRANS)
        self.salu = op.startswith('s_')
        self.vmem = op.startswith(('buffer_', 'global_', 'flat_'))
        self.ds = op.startswith('ds_')
        self.w = []; self.r = []; self.srcc = []; self.ab = []
        R = [regs_of(o) for o in clean]
        if self.mfma:
            self.w = R[0]; self.ab = R[1] + R[2]
            if self.smf:
                self.srcc = R[0]; self.ab += R[3]
            else:
                self.srcc = R[3]
            self.r = self.ab + self.srcc
            if '32x32' in op: self.passes = 8
            elif '16x16' in op: self.passes = 4
            else: self.passes = 2
        elif self.valu:
            if op.startswith('v_cmp'):
                self.w = R[0]; self.r = sum(R[1:], [])
                if op.startswith('v_cmpx'): self.w = self.w + [('s', 126), ('s', 127)]
            elif op.startswith(('v_permlane32_swap', 'v_permlane16_swap', 'v_swap')):
                self.w = R[0] + R[1]; self.r = R[0] + R[1]
            elif op.startswith(('v_add_co', 'v_sub_co', 'v_subrev_co', 'v_addc_co', 'v_subb_co', 'v_div_scale', 'v_mad_u64')):
                self.w = R[0] + R[1]; self.r = sum(R[2:], [])
            elif op in ('v_nop',):
                pass
            else:
                self.w = R[0]; self.r = sum(R[1:], [])
                if op.startswith(('v_fmac', 'v_dot2c', 'v_pk_fmac', 'v_writelane')): self.r = self.r + R[0]
                if op.startswith('v_cndmask') and len(clean) == 3: self.r += [('s', 106), ('s', 107)]
        elif self.vmem:
            lds = re.search(r'\blds\b', rest) is not None or '_lds_' in op
            self.ldsdma = lds
            if 'store' in op or ('atomic' in op):
                self.r = sum(R, [])
                self.store_data = R[0] if op.startswith('buffer_') else (R[1] if len(R) > 1 else [])
                if 'atomic' in op and 'sc0' in rest: self.w = R[0]
            elif lds:
                self.r = sum(R, []) + [('s', 124)]
            else:
                self.w = R[0]; self.r = sum(R[1:], [])
        elif self.ds:
            if 'read' in op or 'permute' in op or 'swizzle' in op or '_rtn' in op:
                self.w = R[0]; self.r = sum(R[1:], [])
            else:
                self.r = sum(R, [])
        elif self.salu:
            if op.startswith(('s_cmp', 's_cbranch', 's_branch', 's_waitcnt', 's_nop', 's_barrier', 's_endpgm', 's_setprio', 's_sleep')):
                self.r = sum(R, [])
            else:
                self.w = R[0] if R else []; self.r = sum(R[1:], [])
                if 'saveexec' in op: self.w = self.w + [('s', 126), ('s', 127)]

def need(p, c):
    out = []
    pw = set(p.w);
    cv_r = set(c.r); cv_w = set(c.w)
    if p.mfma:
        t = {2: (5, 4, 2, 1), 4: (8, 6, 0, 3), 8: (12, 10, 0, 7)}[p.passes]
        if c.mfma:
            if pw & set(c.ab): out.append((t[0], 'mfma D -> mfma A/B'))
            if pw & set(c.srcc):
                if c.srcc == p.w and c.passes == p.passes: out.append((t[2], 'chain'))
                else: out.append((t[1], 'mfma D -> mfma C overlap'))
            elif pw & cv_w and not (c.w == p.w and c.passes == p.passes):
                out.append((t[1], 'mfma D WAW overlap'))
        elif c.valu or c.vmem or c.ds:
            if pw & (cv_r | cv_w): out.append((t[0], 'mfma D -> valu/mem'))
            if c.valu and set(p.srcc) & cv_w: out.append((t[3], 'mfma C WAR valu'))
    if p.valu:
        vw = {x for x in pw if x[0] in 'va'}
        sw = {x for x in pw if x[0] == 's'}
        if p.dot:
            if vw & (cv_r | cv_w) and (c.valu or c.mfma or c.vmem or c.ds):
                if c.op == p.op and not (vw & set(sum([regs_of(o) for o in c.ops[1:3]], []))): pass
                else: out.append((3, 'dot -> other'))
        if c.mfma and vw & cv_r: out.append((2, 'valu -> mfma'))
        if p.trans and c.valu and not c.trans and vw & cv_r: out.append((1, 'trans -> valu'))
        if p.trans and (c.vmem or c.ds) and vw & cv_r: out.append((1, 'trans -> mem (conservative)'))
        if c.op.startswith('v_permlane') and vw & cv_r: out.append((2, 'valu -> permlane'))
        if c.op.startswith(('v_readlane', 'v_readfirstlane')) and vw & cv_r: out.append((1, 'valu -> readlane'))
        if c.valu and ('dpp' in c.text or 'row_' in c.rest or 'quad_perm' in c.rest) and vw & cv_r: out.append((2, 'valu -> dpp'))
        if sw:
            if c.valu and sw & cv_r:
                out.append((4 if c.op.startswith(('v_readlane', 'v_writelane')) else 2, 'valu sgpr -> valu'))
            if c.vmem and sw & cv_r: out.append((5, 'valu sgpr -> vmem'))
            if c.salu and sw & cv_r: out.append((1, 'valu sgpr -> salu (conservative)'))
            if ('s', 126) in sw and (c.mfma or c.op.startswith(('v_permlane', 'v_readlane', 'v_readfirstlane'))): out.append((4, 'valu exec'))
        if 'sdwa' in p.text or 'op_sel' in p.text:
            if c.valu and vw & cv_r: out.append((1, 'opsel'))
    if p.salu and ('s', 124) in pw:
        if c.vmem and getattr(c, 'ldsdma', False): out.append((1, 'm0 -> lds dma'))
    if p.vmem and getattr(p, 'store_data', None) and ('x3' in p.op or 'x4' in p.op):
        if set(p.store_data) & cv_w: out.append((2 if c.valu else 1, 'store data WAR'))
    return max(out) if out else (0, '')

def check(text, verbose=True):
    ins = []; labels = {}
    for n, raw in enumerate(text.splitlines(), 1):
        s = raw.split(';')[0].strip()
        if not s or s.startswith('.'): continue
        m = re.fullmatch(r'([\w.$]+):', s)
        if m: labels[m.group(1)] = len(ins); continue
        ins.append(I(s, n))
    W = 22
    errs = set()
    def succ(i):
        x = ins[i]
        if x.op == 's_endpgm': return []
        if x.op == 's_branch': return [labels[x.ops[0]]]
        if x.op.startswith('s_cbranch'): return [labels[x.ops[0]], i + 1]
        return [i + 1]
    for i, p in enumerate(ins):
        if not (p.mfma or p.valu or p.vmem or (p.salu and ('s', 124) in p.w)): continue
        stack = [(j, 0) for j in succ(i)]
        seen = {}
        while stack:
            j, d = stack.pop()
            if j >= len(ins) or d >= W: continue
            if seen.get(j, 99) <= d: continue
            seen[j] = d
            c = ins[j]
            k, why = need(p, c)
            if k > d: errs.add((p.line, c.line, k, d, why, p.text, c.text))
            for t in succ(j): stack.append((t, d + c.ws))
    for e in sorted(errs):
        print(f"HAZARD L{e[0]} -> L{e[1]}: need {e[2]} have {e[3]} [{e[4]}]\n    {e[5]}\n    {e[6]}")
    return len(errs)

if __name__ == '__main__':
    n = check(open(sys.argv[1]).read())
    print('hazards:', n)
```

```python
import sys, math, struct
NAME = "recurrent_scan__grouped_kv_mqa__glu_gated_swiglu__prompt"

def f32(x): return "0x%08x" % struct.unpack('<I', struct.pack('<f', x))[0]
LOG2E = 1.4426950408889634

H_OFF = 0
H_SIZE = 128 * 144 * 1024
QF1_OFF = H_OFF + H_SIZE
QF2_OFF = QF1_OFF + 64 * 32 * 1024
KV_OFF = QF2_OFF + 64 * 32 * 128
KVB = 2560
OF_OFF = KV_OFF + 64 * KVB
PF_OFF = OF_OFF + 64 * 36 * 1024
WS_USED = PF_OFF + 4 * 64 * 144 * 256
OOB = 0x80000000
X_BYTES = 2048 * 576 * 2

SLOT1 = 12288
NS1 = 12
FLAGS = NS1 * SLOT1
AFLAGS = FLAGS + 1024
LDS_MAIN = FLAGS + 2048
SLOT2 = 18432
NS2 = 6
XCH = NS2 * SLOT2

class G:
    def __init__(self): self.L = []
    def __call__(self, s):
        for x in s.strip('\n').split('\n'):
            x = x.strip()
            if x: self.L.append('    ' + x)
    def lab(self, s): self.L.append(s + ':')
    def raw(self, s): self.L.append(s)
    def text(self): return '\n'.join(self.L) + '\n'

def vr(a, n): return f"v[{a}:{a+n-1}]" if n > 1 else f"v{a}"
def sr(a, n): return f"s[{a}:{a+n-1}]" if n > 1 else f"s{a}"

P_X, P_WQ, P_WK, P_WV, P_WO, P_BX, P_W1, P_W3, P_W2, P_OUT, P_DBG, P_WS = [32 + 2 * i for i in range(12)]

def srd(g, d, p, nbytes):
    g(f"s_mov_b32 s{d}, s{p}\ns_mov_b32 s{d+1}, s{p+1}\ns_mov_b32 s{d+2}, {nbytes}\ns_mov_b32 s{d+3}, 0x00020000")

def header(g, name, nwg):
    g.raw(f".globl {name}\n.p2align 8\n.type {name},@function")
    g.lab(name)
    g(f"s_cmp_ge_u32 s2, {nwg}\ns_cbranch_scc1 {name}_end")
    g("s_load_dwordx16 s[32:47], s[0:1], 0\ns_load_dwordx8 s[48:55], s[0:1], 64")

sWAVE, sRB, sCB, sNB, sSP, sT0, sT1, sT2, sT3 = 3, 4, 5, 6, 7, 56, 57, 58, 59
vLANE = 1

sSPIN = 90
def spin(g, lab, vft, vfr, sneed, back=None):
    g.lab(lab)
    g(f"""
    ds_read_b32 v{vft}, v{vfr}
    s_sub_u32 s{sSPIN}, s{sSPIN}, 1
    s_cmp_lt_i32 s{sSPIN}, 0
    s_cbranch_scc1 {lab}x
    s_waitcnt lgkmcnt(0)
    v_cmp_gt_u32 vcc, s{sneed}, v{vft}
    s_cbranch_vccnz {lab}
    """)
    g.lab(lab + 'x')
    g('s_waitcnt lgkmcnt(0)')
    if back: g(f's_branch {back}')

def decode_main(g):
    g(f"""
    s_mov_b32 s{sSPIN}, 0x40000
    v_lshrrev_b32 v2, 6, v0
    v_and_b32 v{vLANE}, 63, v0
    s_and_b32 s{sT0}, s2, 7
    v_readfirstlane_b32 s{sWAVE}, v2
    s_lshr_b32 s{sT1}, s2, 3
    s_and_b32 s{sSP}, s{sT0}, 3
    s_lshr_b32 s{sT0}, s{sT0}, 2
    s_lshl_b32 s{sT0}, s{sT0}, 3
    s_lshr_b32 s{sRB}, s{sT1}, 2
    s_add_u32 s{sRB}, s{sRB}, s{sT0}
    s_and_b32 s{sNB}, s{sT1}, 3
    s_lshl_b32 s{sCB}, s{sSP}, 2
    s_add_u32 s{sCB}, s{sCB}, s{sNB}
    """)

def spread(slots, items):
    n = len(slots); m = len(items)
    for i, it in enumerate(items):
        slots[min(n - 1, i * n // m)].append(it)

def phase1(g, pfx):
    S_X, S_WQ, S_AUX, S_W, S_WS = 8, 12, 16, 20, 24
    sM0W, sDMA, sSTEPA, sSOA, sSOB, sNEED, sCNT, sHST, sIT, sWRAP, sONES, sSELLO, sSELHI, sT32 = 60, 61, 62, 63, 64, 65, 66, 67, 68, 69, 70, 71, 72, 73
    sMA, sMB = 74, 76
    vRD0, vRD1, vDW, vHST, vC1, vC2, vR, vFW, vFR, vFV, vFT, vT0, vT1, vT2, vT3, vDA, vDB = 2, 3, 4, 5, 6, 7, 8, 9, 10, 11, 12, 13, 14, 15, 16, 17, 18
    AF = 24; ACC = [48, 80]; XN = 112
    g(f"""
    s_and_b32 s{sT0}, s{sWAVE}, 1
    s_lshr_b32 s{sT1}, s{sWAVE}, 1
    s_mul_i32 s{sM0W}, s{sT0}, 6144
    s_lshl_b32 s{sT2}, s{sT1}, 10
    s_add_u32 s{sM0W}, s{sM0W}, s{sT2}
    s_lshl_b32 s{sT32}, s{sRB}, 2
    s_add_u32 s{sT32}, s{sT32}, s{sWAVE}
    v_and_b32 v{vT0}, 31, v{vLANE}
    v_lshrrev_b32 v{vT1}, 5, v{vLANE}
    s_lshl_b32 s{sT2}, s{sT32}, 5
    v_add_u32 v{vT2}, s{sT2}, v{vT0}
    v_mul_u32_u24 v{vT2}, 1152, v{vT2}
    v_lshl_add_u32 v{vT2}, v{vT1}, 4, v{vT2}
    s_waitcnt lgkmcnt(0)
    """)
    srd(g, S_X, P_X, X_BYTES)
    for j in range(36):
        g(f"buffer_load_dwordx4 {vr(XN+4*j,4)}, v{vT2}, {sr(S_X,4)}, 0 offen offset:{32*j}")
    srd(g, S_WQ, P_WQ, 576 * 576 * 2)
    srd(g, S_WS, P_WS, WS_USED)
    g(f"""
    s_and_b32 s{sT2}, s{sCB}, 1
    s_cmp_eq_u32 s{sT2}, 0
    s_cselect_b32 s{S_AUX}, s{P_WK}, s{P_WV}
    s_cselect_b32 s{S_AUX+1}, s{P_WK+1}, s{P_WV+1}
    s_cmp_eq_u32 s{sT1}, 0
    s_cselect_b32 s{S_AUX}, s{P_WQ}, s{S_AUX}
    s_cselect_b32 s{S_AUX+1}, s{P_WQ+1}, s{S_AUX+1}
    s_mov_b32 s{S_AUX+2}, {576*36}
    s_cselect_b32 s{S_AUX+2}, {576*576*2}, s{S_AUX+2}
    s_mov_b32 s{S_AUX+3}, 0x00020000
    s_cselect_b32 s{S_W}, s{P_W1}, s{P_W3}
    s_cselect_b32 s{S_W+1}, s{P_W1+1}, s{P_W3+1}
    s_mov_b32 s{S_W+2}, {576*4608*2}
    s_mov_b32 s{S_W+3}, 0x00020000
    s_movk_i32 s{sSTEPA}, 576
    s_cselect_b32 s{sSTEPA}, 18432, s{sSTEPA}
    s_mov_b32 s{sMA}, 0x33333333
    s_mov_b32 s{sMA+1}, 0x33333333
    s_mov_b32 s{sMB}, 0xcccccccc
    s_mov_b32 s{sMB+1}, 0xcccccccc
    """)
    g(f"""
    v_lshrrev_b32 v{vT0}, 2, v{vLANE}
    s_mul_i32 s{sT2}, s{sT0}, 48
    v_add_u32 v{vT0}, s{sT2}, v{vT0}
    v_and_b32 v{vT1}, 3, v{vLANE}
    s_mul_i32 s{sT2}, s{sCB}, 72
    s_and_b32 s{sT3}, s{sCB}, 2
    s_lshl_b32 s{sT3}, s{sT3}, 1
    s_cmp_eq_u32 s{sT1}, 0
    s_cselect_b32 s{sT3}, s{sT2}, s{sT3}
    s_cselect_b32 s{sSOA}, 1152, 36
    v_mul_lo_u32 v{vDA}, v{vT0}, s{sSOA}
    v_lshl_add_u32 v{vDA}, v{vT1}, 4, v{vDA}
    v_add_u32 v{vDA}, s{sT3}, v{vDA}
    s_cselect_b32 s{sT3}, 32, 36
    s_cselect_b32 s{sSOA}, 36, 16
    s_add_u32 s{sT3}, s{sT3}, s{sT2}
    v_and_b32 v{vT2}, 1, v{vLANE}
    v_mul_lo_u32 v{vT2}, v{vT2}, s{sSOA}
    v_mul_u32_u24 v{vDB}, 1152, v{vT0}
    v_add3_u32 v{vDB}, v{vDB}, v{vT2}, s{sT3}
    s_lshl_b32 s{sT3}, s{sT1}, 1
    v_xor_b32 v{vT2}, s{sT3}, v{vT1}
    v_mul_u32_u24 v{vDW}, 9216, v{vT0}
    v_lshl_add_u32 v{vDW}, v{vT2}, 4, v{vDW}
    s_mul_i32 s{sT2}, s{sCB}, 576
    v_add_u32 v{vDW}, s{sT2}, v{vDW}
    """)
    def qkv_dma(c):
        g(f"s_mul_i32 s{sSOA}, s{sSTEPA}, {6*c}\ns_mov_b64 exec, {sr(sMA,2)}")
        for n in range(3):
            g(f"s_add_u32 m0, s{sM0W}, {c*SLOT1 + n*2048}")
            if n: g(f"s_add_u32 s{sSOA}, s{sSOA}, s{sSTEPA}")
            else: g("s_nop 0")
            g(f"buffer_load_dwordx4 v{vDA}, {sr(S_AUX,4)}, s{sSOA} offen lds")
        g(f"s_mov_b64 exec, {sr(sMB,2)}")
        for n in range(3):
            g(f"s_add_u32 m0, s{sM0W}, {c*SLOT1 + n*2048}")
            g(f"s_mov_b32 s{sSOB}, {(6*c+n)*18432}")
            g(f"buffer_load_dwordx4 v{vDB}, {sr(S_WQ,4)}, s{sSOB} offen lds")
        g("s_mov_b64 exec, -1")
    for c in range(4): qkv_dma(c)
    g(f"""
    v_lshlrev_b32 v{vT0}, 2, v{vLANE}
    s_lshl_b32 s{sT2}, s{sWAVE}, 8
    s_add_u32 s{sT2}, s{sT2}, {FLAGS}
    v_add_u32 v{vFW}, s{sT2}, v{vT0}
    v_mov_b32 v{vFV}, 0
    ds_write_b32 v{vFW}, v{vFV}
    v_and_b32 v{vT1}, 3, v{vLANE}
    v_lshl_add_u32 v{vFR}, v{vT1}, 8, v{vT0}
    v_add_u32 v{vFR}, {FLAGS}, v{vFR}
    v_bfe_u32 v{vT0}, v{vLANE}, 4, 1
    v_lshrrev_b32 v{vT2}, 5, v{vLANE}
    v_bfe_u32 v{vT3}, v{vLANE}, 2, 2
    v_lshl_add_u32 v{vT3}, v{vT2}, 3, v{vT3}
    v_lshlrev_b32 v{vRD0}, 6, v{vT3}
    v_lshl_add_u32 v{vRD0}, v{vT1}, 3, v{vRD0}
    v_mul_u32_u24 v{vT3}, {1024+32}, v{vT0}
    v_add_u32 v{vRD0}, v{vRD0}, v{vT3}
    v_xor_b32 v{vRD1}, 32, v{vRD0}
    v_mul_u32_u24 v{vHST}, {144*1024}, v{vT0}
    v_and_b32 v{vT1}, 15, v{vLANE}
    v_lshl_add_u32 v{vHST}, v{vT1}, 4, v{vHST}
    v_lshl_add_u32 v{vHST}, v{vT2}, 8, v{vHST}
    s_mov_b32 s{sONES}, 0x3f803f80
    s_mov_b32 s{sSELLO}, 0x00003f80
    s_mov_b32 s{sSELHI}, 0x3f800000
    s_waitcnt lgkmcnt(0)
    s_barrier
    """)
    SA = [ACC[0] + i for i in range(4)]; QA = [ACC[0] + 4 + i for i in range(4)]
    for i in range(4): g(f"v_mov_b32 v{SA[i]}, 0\nv_mov_b32 v{QA[i]}, 0")
    for j in range(36):
        if j % 2 == 0: g(f"s_waitcnt vmcnt({24 + 34 - j})")
        for i in range(4):
            x = XN + 4 * j + i
            g(f"v_dot2_f32_bf16 v{SA[i]}, v{x}, s{sONES}, v{SA[i]}")
            g(f"v_dot2_f32_bf16 v{QA[i]}, v{x}, v{x}, v{QA[i]}")
    for c in (4, 5): qkv_dma(c)
    g(f"s_mov_b32 s{sDMA}, 0")
    def reg_dma(slot, n, inc):
        return [f"s_add_u32 m0, s{sM0W}, {slot*SLOT1 + n*2048}",
                f"buffer_load_dwordx4 v{vDW}, {sr(S_W,4)}, s{sDMA} offen lds",
                inc]
    INC_N = f"s_add_u32 s{sDMA}, s{sDMA}, {16*9216}"
    INC_C = f"s_add_u32 s{sDMA}, s{sDMA}, {64*9216}"
    for c in range(6, 10):
        for n in range(3):
            a, b, inc = reg_dma(c, n, INC_N if n < 2 else INC_C)
            g(a); g("s_nop 0"); g(b); g(inc)
    vM = vT0
    g(f"""
    v_add_f32 v{SA[0]}, v{SA[0]}, v{SA[1]}
    v_add_f32 v{SA[2]}, v{SA[2]}, v{SA[3]}
    v_add_f32 v{QA[0]}, v{QA[0]}, v{QA[1]}
    v_add_f32 v{QA[2]}, v{QA[2]}, v{QA[3]}
    v_add_f32 v{SA[0]}, v{SA[0]}, v{SA[2]}
    v_add_f32 v{QA[0]}, v{QA[0]}, v{QA[2]}
    v_mov_b32 v{SA[1]}, v{SA[0]}
    v_mov_b32 v{QA[1]}, v{QA[0]}
    s_nop 1
    v_permlane32_swap_b32 v{SA[0]}, v{SA[1]}
    v_permlane32_swap_b32 v{QA[0]}, v{QA[1]}
    s_nop 1
    v_add_f32 v{SA[0]}, v{SA[0]}, v{SA[1]}
    v_add_f32 v{QA[0]}, v{QA[0]}, v{QA[1]}
    v_mul_f32 v{vM}, {f32(-1.0/576)}, v{SA[0]}
    v_mul_f32 v{QA[0]}, {f32(1.0/576)}, v{QA[0]}
    v_fma_f32 v{QA[0]}, -v{vM}, v{vM}, v{QA[0]}
    v_max_f32 v{QA[0]}, 0, v{QA[0]}
    v_add_f32 v{vC2}, {f32(1e-5)}, v{QA[0]}
    v_rsq_f32 v{vR}, v{vC2}
    s_nop 0
    v_mul_f32 v{vC1}, {f32(-LOG2E)}, v{vR}
    """)
    TP = ACC[1]
    def cen_a(r):
        t = TP + 2 * (r % 8)
        g(f"v_dot2_f32_bf16 v{t}, v{XN+r}, s{sSELLO}, v{vM}\nv_dot2_f32_bf16 v{t+1}, v{XN+r}, s{sSELHI}, v{vM}")
    def cen_b(r):
        t = TP + 2 * (r % 8)
        g(f"v_cvt_pk_bf16_f32 v{XN+r}, v{t}, v{t+1}")
    for r in range(144 + 4):
        if r < 144: cen_a(r)
        if r >= 4: cen_b(r - 4)
    g(f"""
    s_waitcnt vmcnt(36)
    v_mov_b32 v{vFV}, 1
    ds_write_b32 v{vFW}, v{vFV}
    s_mov_b32 s{sNEED}, 1
    """)
    spin(g, f"{pfx}_w0", vFT, vFR, sNEED)
    g(f"""
    """)
    def rd(J, base_slot0):
        J %= 72
        slot = J // 6; kk = J % 6
        off = (slot % 4) * SLOT1 + kk * 2048
        b = AF + 8 * (J % 3)
        return [f"ds_read_b64_tr_b16 {vr(b,2)}, v{vRD0} offset:{off}",
                f"ds_read_b64_tr_b16 {vr(b+2,2)}, v{vRD0} offset:{off+256}",
                f"ds_read_b64_tr_b16 {vr(b+4,2)}, v{vRD1} offset:{off}",
                f"ds_read_b64_tr_b16 {vr(b+6,2)}, v{vRD1} offset:{off+256}"]
    for J in (0, 1):
        for x in rd(J, 0): g(x)
    g(f"""
    s_mov_b32 s{sIT}, 0
    s_mov_b32 s{sHST}, 0x40000000
    """)
    def epilogue(X):
        L = []
        for t in range(2):
            a = [X + 16 * t + j for j in range(8)]; b = [X + 16 * t + 8 + j for j in range(8)]
            st = [[f"v_mul_f32 v{b[j]}, v{a[j]}, v{b[j]}" for j in range(8)],
                  [f"v_mul_f32 v{a[j]}, v{vC1}, v{a[j]}" for j in range(8)],
                  [f"v_exp_f32 v{a[j]}, v{a[j]}" for j in range(8)],
                  [f"v_fma_f32 v{a[j]}, v{a[j]}, v{vC2}, v{vC2}" for j in range(8)],
                  [f"v_rcp_f32 v{a[j]}, v{a[j]}" for j in range(8)],
                  [f"v_mul_f32 v{b[j]}, v{b[j]}, v{a[j]}" for j in range(8)]]
            for step in range(8 + 10):
                for k in range(6):
                    j = step - 2 * k
                    if 0 <= j < 8: L.append(st[k][j])
            for i in range(4): L.append(f"v_cvt_pk_bf16_f32 v{a[i]}, v{b[2*i]}, v{b[2*i+1]}")
            L.append(f"buffer_store_dwordx4 {vr(a[0],4)}, v{vHST}, {sr(S_WS,4)}, s{sHST} offen offset:{512*t}")
        return L
    retries = []
    def half(hidx):
        X = ACC[hidx]; Y = ACC[1 - hidx]
        fill = [[] for _ in range(2 * 33)]
        spread(fill, epilogue(Y))
        for j in range(36):
            J = 36 * hidx + j; cc = j // 6; kk = j % 6; c12 = J // 6
            pre = []
            if kk == 0:
                g(f"s_waitcnt vmcnt(21) lgkmcnt(4)")
                g(f"v_add_u32 v{vFV}, 1, v{vFV}")
                pre.append(f"ds_write_b32 v{vFW}, v{vFV}")
            else:
                g("s_waitcnt lgkmcnt(4)")
            if kk == 2: pre.append(f"ds_read_b32 v{vFT}, v{vFR}")
            if kk == 3:
                lab = f"{pfx}_r{c12}"
                g(f"v_cmp_gt_u32 vcc, s{sNEED}, v{vFT}\ns_cbranch_vccnz {lab}")
                g.lab(lab + "b")
                retries.append(lab)
            Jr = (J + 2) % 72
            if Jr in (24, 48): g(f"v_add_u32 v{vRD0}, {4*SLOT1}, v{vRD0}\nv_add_u32 v{vRD1}, {4*SLOT1}, v{vRD1}")
            if Jr == 0: g(f"v_subrev_u32 v{vRD0}, {8*SLOT1}, v{vRD0}\nv_subrev_u32 v{vRD1}, {8*SLOT1}, v{vRD1}")
            R = rd(J + 2, 0)
            b = AF + 8 * (J % 3)
            c0 = "0" if j == 0 else vr(X, 16); c1 = "0" if j == 0 else vr(X + 16, 16)
            dma = None
            if kk >= 3:
                n = kk - 3
                slot = (c12 + 10) % 12
                if n < 2: inc = INC_N
                elif cc == 1: inc = f"s_add_u32 s{sDMA}, s{sDMA}, s{sWRAP}"
                else: inc = INC_C
                dma = reg_dma(slot, n, inc)
            if dma: g(dma[0])
            g(f"v_mfma_f32_32x32x16_bf16 {vr(X,16)}, {vr(b,4)}, {vr(XN+4*j,4)}, {c0}")
            for x in pre: g(x)
            g(R[0]); g(R[1])
            if j >= 3:
                for x in fill[2 * (j - 3)]: g(x)
            if kk == 4: g(f"s_add_u32 s{sNEED}, s{sNEED}, 1")
            g(f"v_mfma_f32_32x32x16_bf16 {vr(X+16,16)}, {vr(b+4,4)}, {vr(XN+4*j,4)}, {c1}")
            g(R[2]); g(R[3])
            if dma: g(dma[1]); g(dma[2])
            if j >= 3:
                for x in fill[2 * (j - 3) + 1]: g(x)
    WRAPN = (-(512 * 9216) + 64) & 0xffffffff
    g(f"s_mov_b32 s{sWRAP}, {WRAPN}")
    g.lab(f"{pfx}_H2")
    half(0)
    g(f"s_cmp_lg_u32 s{sIT}, 0\ns_cbranch_scc1 {pfx}_H1pre")
    X = ACC[0]
    g(f"""
    s_nop 7
    v_mul_f32 v{vT0}, {f32(18 ** -0.5 * LOG2E)}, v{vR}
    v_lshlrev_b32 v{vT1}, 4, v{vLANE}
    s_lshl_b32 s{sT0}, s{sT32}, 5
    s_lshl_b32 s{sT1}, s{sCB}, 1
    s_add_u32 s{sT0}, s{sT0}, s{sT1}
    s_lshl_b32 s{sT1}, s{sT0}, 10
    s_add_u32 s{sT1}, s{sT1}, {QF1_OFF}
    s_lshl_b32 s{sT2}, s{sT0}, 7
    s_add_u32 s{sT2}, s{sT2}, {QF2_OFF}
    s_mul_i32 s{sT3}, s{sT32}, {KVB}
    s_add_u32 s{sT3}, s{sT3}, {KV_OFF}
    """)
    for r in list(range(16)) + [16, 17, 20, 21]: g(f"v_mul_f32 v{X+r}, v{vT0}, v{X+r}")
    for r in range(24, 32): g(f"v_mul_f32 v{X+r}, v{vR}, v{X+r}")
    for base in (0, 8, 24):
        for i in range(4): g(f"v_cvt_pk_bf16_f32 v{X+base+i}, v{X+base+2*i}, v{X+base+2*i+1}")
    g(f"""
    v_cvt_pk_bf16_f32 v{X+16}, v{X+16}, v{X+17}
    v_cvt_pk_bf16_f32 v{X+20}, v{X+20}, v{X+21}
    buffer_store_dwordx4 {vr(X,4)}, v{vT1}, {sr(S_WS,4)}, s{sT1} offen
    buffer_store_dwordx4 {vr(X+8,4)}, v{vT1}, {sr(S_WS,4)}, s{sT1} offen offset:1024
    v_lshrrev_b32 v{vT2}, 5, v{vLANE}
    v_lshlrev_b32 v{vT3}, 31, v{vT2}
    v_lshl_add_u32 v{vT3}, v{vLANE}, 2, v{vT3}
    buffer_store_dword v{X+16}, v{vT3}, {sr(S_WS,4)}, s{sT2} offen
    buffer_store_dword v{X+20}, v{vT3}, {sr(S_WS,4)}, s{sT2} offen offset:128
    v_and_b32 v{vT0}, 31, v{vLANE}
    s_cmp_ge_u32 s{sCB}, 4
    s_cbranch_scc1 {pfx}_qdone
    s_cmp_eq_u32 s{sCB}, 1
    s_cbranch_scc1 {pfx}_q1
    s_cmp_eq_u32 s{sCB}, 2
    s_cbranch_scc1 {pfx}_q2
    s_cmp_eq_u32 s{sCB}, 3
    s_cbranch_scc1 {pfx}_q3
    buffer_store_dwordx4 {vr(X+24,4)}, v{vT1}, {sr(S_WS,4)}, s{sT3} offen
    s_branch {pfx}_qdone
    """)
    g.lab(f"{pfx}_q1")
    g(f"v_lshlrev_b32 v{vT3}, 1, v{vT0}\nv_lshl_add_u32 v{vT3}, v{vT2}, 8, v{vT3}")
    for j in range(8):
        d = (j & 3) + 8 * (j >> 2)
        op = "buffer_store_short_d16_hi" if j & 1 else "buffer_store_short"
        g(f"{op} v{X+24+(j>>1)}, v{vT3}, {sr(S_WS,4)}, s{sT3} offen offset:{1280 + d*64}")
    g(f"s_branch {pfx}_qdone")
    g.lab(f"{pfx}_q2")
    g(f"""
    v_xor_b32 v{vT3}, 1, v{vT2}
    v_lshlrev_b32 v{vT3}, 31, v{vT3}
    v_lshl_add_u32 v{vT3}, v{vT0}, 3, v{vT3}
    v_mov_b32 v{X+28}, v{X+27}
    v_mov_b32 v{X+29}, 0x3f803f80
    buffer_store_dwordx2 {vr(X+28,2)}, v{vT3}, {sr(S_WS,4)}, s{sT3} offen offset:1024
    s_branch {pfx}_qdone
    """)
    g.lab(f"{pfx}_q3")
    g(f"""
    v_xor_b32 v{vT1}, 1, v{vT2}
    v_lshlrev_b32 v{vT3}, 1, v{vT0}
    v_lshl_add_u32 v{vT0}, v{vT1}, 7, v{vT3}
    v_lshl_add_u32 v{vT3}, v{vT1}, 31, v{vT3}
    v_cmp_eq_u32 vcc, 0, v{vT2}
    v_mov_b32 v{X+29}, 0x3f80
    s_nop 0
    v_cndmask_b32 v{X+28}, v{X+27}, v{X+29}, vcc
    buffer_store_short v{X+28}, v{vT0}, {sr(S_WS,4)}, s{sT3} offen offset:{1280 + 16*64}
    buffer_store_short_d16_hi v{X+27}, v{vT3}, {sr(S_WS,4)}, s{sT3} offen offset:{1280 + 17*64}
    """)
    g.lab(f"{pfx}_qdone")
    g(f"s_branch {pfx}_H1")
    g.lab(f"{pfx}_H1pre")
    g(f"s_add_u32 s{sHST}, s{sHST}, 1024")
    g.lab(f"{pfx}_H1")
    half(1)
    g(f"""
    s_lshl_b32 s{sT0}, s{sT32}, 1
    s_mul_i32 s{sT0}, s{sT0}, 144
    s_mul_i32 s{sT1}, s{sCB}, 9
    s_add_u32 s{sT0}, s{sT0}, s{sT1}
    s_lshl_b32 s{sT1}, s{sIT}, 1
    s_add_u32 s{sT0}, s{sT0}, s{sT1}
    s_lshl_b32 s{sHST}, s{sT0}, 10
    s_add_u32 s{sIT}, s{sIT}, 1
    s_cmp_eq_u32 s{sIT}, 4
    s_cselect_b32 s{sWRAP}, 0x40000000, s{sWRAP}
    s_cmp_lt_u32 s{sIT}, 5
    s_cbranch_scc1 {pfx}_H2
    s_nop 7
    """)
    for x in epilogue(ACC[1]): g(x)
    g(f"s_branch {pfx}_done")
    for lab in retries:
        spin(g, lab, vFT, vFR, sNEED, lab + 'b')
    g.lab(f"{pfx}_done")

def gemm2(g, pfx):
    S_W2, S_WS = 8, 24
    sM0W, sDMA, sNEED, sIT, sHB, sPF = 60, 61, 65, 68, 62, 63
    vRDA, vRDB, vFW, vFR, vFV, vFT, vT0, vT1, vT2, vT3, vH0, vH1 = 2, 3, 9, 10, 11, 12, 13, 14, 15, 16, 4, 5
    vD = [17, 18, 19, 20, 21]
    AF = 24; NAF = 6; LA = 4
    ACC = 48
    BF = 128; NB = 12; LB = 8
    srd(g, S_W2, P_W2, 4608 * 576 * 2)
    srd(g, S_WS, P_WS, WS_USED)
    g(f"""
    v_lshlrev_b32 v{vH0}, 4, v{vLANE}
    v_add_u32 v{vH1}, {144*1024}, v{vH0}
    s_lshl_b32 s{sT0}, s{sRB}, 2
    s_add_u32 s{sT0}, s{sT0}, s{sWAVE}
    s_mul_i32 s{sHB}, s{sT0}, 288
    s_mul_i32 s{sT1}, s{sSP}, 36
    s_add_u32 s{sHB}, s{sHB}, s{sT1}
    s_lshl_b32 s{sHB}, s{sHB}, 10
    s_lshl_b32 s{sT1}, s{sSP}, 6
    s_add_u32 s{sT1}, s{sT1}, s{sT0}
    s_mul_i32 s{sT1}, s{sT1}, 144
    s_mul_i32 s{sT2}, s{sNB}, 36
    s_add_u32 s{sT1}, s{sT1}, s{sT2}
    s_lshl_b32 s{sPF}, s{sT1}, 8
    s_add_u32 s{sPF}, s{sPF}, {PF_OFF}
    """)
    def hload(K):
        b = BF + 8 * (K % NB)
        L = [f"buffer_load_dwordx4 {vr(b,4)}, v{vH0}, {sr(S_WS,4)}, s{sHB} offen offset:{(K%4)*1024}",
             f"buffer_load_dwordx4 {vr(b+4,4)}, v{vH1}, {sr(S_WS,4)}, s{sHB} offen offset:{(K%4)*1024}"]
        if K % 4 == 3: L.append(f"s_add_u32 s{sHB}, s{sHB}, 4096")
        return L
    g(f"s_mov_b32 s{sT3}, 3641")
    for n in range(5):
        base = 64 * n if n < 4 else 224
        g(f"""
        v_add_u32 v{vT0}, {base}, v{vLANE}
        v_mul_u32_u24 v{vT1}, s{sT3}, v{vT0}
        v_lshrrev_b32 v{vT1}, 16, v{vT1}
        v_mul_u32_u24 v{vT2}, {1152 - 288}, v{vT1}
        v_lshl_add_u32 v{vD[n]}, v{vT0}, 4, v{vT2}
        """)
    g(f"""
    s_mul_i32 s{sT0}, s{sSP}, 1152
    s_lshl_b32 s{sT1}, s{sWAVE}, 4
    s_add_u32 s{sT0}, s{sT0}, s{sT1}
    s_mul_i32 s{sDMA}, s{sT0}, 1152
    s_mul_i32 s{sT1}, s{sNB}, 288
    s_add_u32 s{sDMA}, s{sDMA}, s{sT1}
    s_mul_i32 s{sM0W}, s{sWAVE}, 4608
    """)
    def dma(slot, n):
        L = [f"s_add_u32 m0, s{sM0W}, {slot*SLOT2 + (1024*n if n < 4 else 3584)}",
             f"buffer_load_dwordx4 v{vD[n]}, {sr(S_W2,4)}, s{sDMA} offen lds"]
        if n == 4: L.append(f"s_add_u32 s{sDMA}, s{sDMA}, {64*1152}")
        return L
    for c in range(-4, 0):
        for K in (2 * c + 8, 2 * c + 9):
            for x in hload(K): g(x)
        for n in range(5):
            d = dma(c + 4, n)
            g(d[0]); g("s_nop 0")
            for x in d[1:]: g(x)
    g(f"""
    v_lshlrev_b32 v{vT0}, 2, v{vLANE}
    s_lshl_b32 s{sT2}, s{sWAVE}, 8
    s_add_u32 s{sT2}, s{sT2}, {FLAGS}
    v_add_u32 v{vFW}, s{sT2}, v{vT0}
    v_and_b32 v{vT1}, 3, v{vLANE}
    v_lshl_add_u32 v{vFR}, v{vT1}, 8, v{vT0}
    v_add_u32 v{vFR}, {FLAGS}, v{vFR}
    v_lshrrev_b32 v{vT0}, 5, v{vLANE}
    v_bfe_u32 v{vT2}, v{vLANE}, 4, 1
    v_bfe_u32 v{vT3}, v{vLANE}, 2, 2
    v_lshl_add_u32 v{vT3}, v{vT2}, 2, v{vT3}
    v_lshl_add_u32 v{vT3}, v{vT0}, 4, v{vT3}
    v_mul_u32_u24 v{vRDA}, 288, v{vT3}
    v_lshl_add_u32 v{vRDA}, v{vT1}, 3, v{vRDA}
    v_add_u32 v{vRDB}, {3*SLOT2}, v{vRDA}
    """)
    for i in range(72): g(f"v_mov_b32 v{ACC+i}, 0")
    g(f"""
    s_waitcnt vmcnt(27)
    v_mov_b32 v{vFV}, 1
    ds_write_b32 v{vFW}, v{vFV}
    s_mov_b32 s{sNEED}, 1
    """)
    spin(g, f"{pfx}_w0", vFT, vFR, sNEED)
    g(f"""
    s_mov_b32 s{sNEED}, 2
    s_mov_b32 s{sIT}, 0
    """)
    def rd(F):
        F %= 108
        K = F // 9; nt = F % 9; slot = K // 2; kk = K % 2
        a = vRDA if slot < 3 else vRDB
        off = (slot % 3) * SLOT2 + kk * 9216 + nt * 32
        b = AF + 4 * (F % NAF)
        return [f"ds_read_b64_tr_b16 {vr(b,2)}, v{a} offset:{off}",
                f"ds_read_b64_tr_b16 {vr(b+2,2)}, v{a} offset:{off+2304}"]
    for F in range(LA):
        for x in rd(F): g(x)
    retries = []
    g.lab(f"{pfx}_loop")
    for K in range(12):
        c = K // 2; kk = K % 2
        for nt in range(9):
            F = 9 * K + nt
            pre = []; post = []
            w = f"lgkmcnt({2*(LA-1)})"
            if nt == 0:
                if kk == 0: w += " vmcnt(18)"
                else: w += " vmcnt(40)"
            g(f"s_waitcnt {w}")
            if kk == 0 and nt == 0:
                g(f"v_add_u32 v{vFV}, 1, v{vFV}")
                pre.append(f"ds_write_b32 v{vFW}, v{vFV}")
            if kk == 1 and nt == 0: pre.append(f"ds_read_b32 v{vFT}, v{vFR}")
            if kk == 1 and nt == 4:
                lab = f"{pfx}_r{c}"
                g(f"v_cmp_gt_u32 vcc, s{sNEED}, v{vFT}\ns_cbranch_vccnz {lab}")
                g.lab(lab + "b"); retries.append(lab)
                g(f"s_add_u32 s{sNEED}, s{sNEED}, 1")
            d = None
            if kk == 0 and nt == 1: post += hload(K + 8)
            if kk == 0 and nt == 3: post += hload(K + 9)
            if kk == 0 and nt >= 5: d = dma((c + 4) % 6, nt - 5)
            if kk == 1 and nt == 1: d = dma((c + 4) % 6, 4)
            if d: g(d[0]); post += d[1:]
            R = rd(F + LA)
            a = AF + 4 * (F % NAF); b = BF + 8 * (K % NB)
            A0 = ACC + nt * 4; A1 = ACC + (9 + nt) * 4
            g(f"v_mfma_f32_16x16x32_bf16 {vr(A0,4)}, {vr(a,4)}, {vr(b,4)}, {vr(A0,4)}")
            for x in pre: g(x)
            g(R[0])
            g(f"v_mfma_f32_16x16x32_bf16 {vr(A1,4)}, {vr(a,4)}, {vr(b+4,4)}, {vr(A1,4)}")
            g(R[1])
            for x in post: g(x)
            if c == 1 and kk == 1 and nt == 8:
                g(f"""
                s_cmp_eq_u32 s{sIT}, 2
                s_cselect_b32 s{sDMA}, 0x40000000, s{sDMA}
                s_cselect_b32 s{sHB}, 0x40000000, s{sHB}
                """)
    g(f"""
    s_add_u32 s{sIT}, s{sIT}, 1
    s_cmp_lt_u32 s{sIT}, 3
    s_cbranch_scc1 {pfx}_loop
    s_nop 7
    """)
    O = BF
    for nt in range(9):
        A0 = ACC + nt * 4; A1 = ACC + (9 + nt) * 4; o = 224 + 4 * (nt % 4)
        g(f"""
        v_cvt_pk_bf16_f32 v{o}, v{A0}, v{A0+1}
        v_cvt_pk_bf16_f32 v{o+1}, v{A0+2}, v{A0+3}
        v_cvt_pk_bf16_f32 v{o+2}, v{A1}, v{A1+1}
        v_cvt_pk_bf16_f32 v{o+3}, v{A1+2}, v{A1+3}
        buffer_store_dwordx4 {vr(o,4)}, v{vH0}, {sr(S_WS,4)}, s{sPF} offen offset:{(nt%4)*1024}
        """)
        if nt % 4 == 3: g(f"s_add_u32 s{sPF}, s{sPF}, 4096")
    g(f"s_branch {pfx}_done")
    for lab in retries:
        spin(g, lab, vFT, vFR, sNEED, lab + 'b')
    g.lab(f"{pfx}_done")

CSHIFT = 90.0
def attention(g, pfx):
    S_WS = 24
    sA, sKH, sHEAD, sKV, sIT, sNPRE, sPASS, sKV0, sROUND = 60, 61, 62, 63, 64, 65, 66, 67, 68
    vK1, vK2, vV, vIDX, vT0, vT1, vT2, vT3, vFW, vFR, vXW, vXR, vQ2o = 2, 3, 4, 5, 6, 7, 8, 9, 10, 11, 12, 13, 14
    vM = [16, 17, 18, 19]
    Q1 = lambda i: 24 + 4 * i
    Q2 = lambda i: 40 + 2 * i
    O = lambda i: 48 + 16 * i
    S = lambda i: 112 + 16 * i
    KVb = lambda t: 176 + 16 * (t % 4)
    PK = lambda t: 240 + 8 * t
    srd(g, S_WS, P_WS, WS_USED)
    g(f"""
    s_setprio 2
    s_sub_u32 s{sA}, s{sWAVE}, 4
    s_lshr_b32 s{sKH}, s{sA}, 1
    s_and_b32 s{sT0}, s{sA}, 1
    s_lshl_b32 s{sHEAD}, s{sCB}, 1
    s_add_u32 s{sHEAD}, s{sHEAD}, s{sT0}
    v_lshlrev_b32 v{vK1}, 4, v{vLANE}
    v_lshrrev_b32 v{vT0}, 5, v{vLANE}
    v_lshlrev_b32 v{vT1}, 31, v{vT0}
    v_lshl_add_u32 v{vK2}, v{vLANE}, 3, v{vT1}
    v_lshl_add_u32 v{vQ2o}, v{vLANE}, 2, v{vT1}
    v_and_b32 v{vT2}, 31, v{vLANE}
    v_lshlrev_b32 v{vV}, 6, v{vT2}
    v_lshl_add_u32 v{vV}, v{vT0}, 4, v{vV}
    v_mov_b32 v{vT3}, {OOB}
    v_cmp_lt_u32 vcc, 18, v{vT2}
    v_mov_b32 v{vIDX}, 0xdddddddd
    s_nop 0
    v_cndmask_b32 v{vV}, v{vV}, v{vT3}, vcc
    s_mul_i32 s{sKV0}, s{sKH}, {32*KVB}
    s_add_u32 s{sKV0}, s{sKV0}, {KV_OFF}
    """)
    for i in range(4):
        g(f"""
        s_lshl_b32 s{sT0}, s{sKH}, 1
        s_xor_b32 s{sT0}, s{sT0}, {i}
        s_lshl_b32 s{sT1}, s{sRB}, 2
        s_add_u32 s{sT0}, s{sT0}, s{sT1}
        s_lshl_b32 s{sT0}, s{sT0}, 5
        s_add_u32 s{sT0}, s{sT0}, s{sHEAD}
        s_lshl_b32 s{sT1}, s{sT0}, 10
        s_add_u32 s{sT1}, s{sT1}, {QF1_OFF}
        s_lshl_b32 s{sT2}, s{sT0}, 7
        s_add_u32 s{sT2}, s{sT2}, {QF2_OFF}
        buffer_load_dwordx4 {vr(Q1(i),4)}, v{vK1}, {sr(S_WS,4)}, s{sT1} offen
        buffer_load_dword v{Q2(i)}, v{vQ2o}, {sr(S_WS,4)}, s{sT2} offen
        """)
    g(f"""
    v_lshlrev_b32 v{vT0}, 2, v{vLANE}
    s_lshl_b32 s{sT0}, s{sA}, 8
    s_add_u32 s{sT0}, s{sT0}, {AFLAGS}
    v_add_u32 v{vFW}, s{sT0}, v{vT0}
    v_xor_b32 v{vFR}, 512, v{vFW}
    s_mul_i32 s{sT0}, s{sA}, 6144
    s_add_u32 s{sT0}, s{sT0}, {XCH}
    v_add_u32 v{vXW}, s{sT0}, v{vK1}
    s_xor_b32 s{sT1}, s{sA}, 2
    s_mul_i32 s{sT0}, s{sT1}, 6144
    s_add_u32 s{sT0}, s{sT0}, {XCH}
    v_add_u32 v{vXR}, s{sT0}, v{vK1}
    s_mov_b32 s{sNPRE}, 1
    s_mov_b32 s{sPASS}, {f32(CSHIFT)}
    s_mov_b32 s{sROUND}, 0
    """)
    def kload(t, inc=True):
        b = KVb(t)
        return [f"buffer_load_dwordx4 {vr(b,4)}, v{vK1}, {sr(S_WS,4)}, s{sKV} offen",
                f"buffer_load_dwordx2 {vr(b+12,2)}, v{vK2}, {sr(S_WS,4)}, s{sKV} offen offset:1024",
                f"buffer_load_dwordx4 {vr(b+4,4)}, v{vV}, {sr(S_WS,4)}, s{sKV} offen offset:1280",
                f"buffer_load_dwordx4 {vr(b+8,4)}, v{vV}, {sr(S_WS,4)}, s{sKV} offen offset:1312",
                f"s_add_u32 s{sKV}, s{sKV}, {KVB}"]
    g.lab(f"{pfx}_restart")
    for i in range(4): g(f"v_mov_b32 v{Q2(i)+1}, 0\nv_mov_b32 v{vM[i]}, 0xff800000")
    g(f"s_mov_b32 s{sT3}, {KV_OFF}\ns_mov_b32 s{sIT}, 0")
    g.lab(f"{pfx}_pre")
    for t in range(2):
        g(f"buffer_load_dwordx4 {vr(PK(t),4)}, v{vK1}, {sr(S_WS,4)}, s{sT3} offen offset:{KVB*t}")
        g(f"buffer_load_dwordx2 {vr(PK(t)+4,2)}, v{vK2}, {sr(S_WS,4)}, s{sT3} offen offset:{KVB*t+1024}")
    g(f"s_add_u32 s{sT3}, s{sT3}, {2*KVB}")
    g(f"s_mov_b32 s{sKV}, s{sKV0}")
    for t in range(3):
        for x in kload(t): g(x)
    g("s_waitcnt vmcnt(12)")
    for t in range(2):
        for i in range(4):
            g(f"v_mfma_f32_32x32x8_bf16 {vr(S(i),16)}, {vr(PK(t)+4,2)}, {vr(Q2(i),2)}, 0")
            g(f"v_mfma_f32_32x32x16_bf16 {vr(S(i),16)}, {vr(PK(t),4)}, {vr(Q1(i),4)}, {vr(S(i),16)}")
        g("s_nop 5")
        for i in range(4):
            for r in range(0, 16, 2):
                g(f"v_max3_f32 v{vM[i]}, v{S(i)+r}, v{S(i)+r+1}, v{vM[i]}")
    g(f"""
    s_add_u32 s{sIT}, s{sIT}, 1
    s_cmp_lt_u32 s{sIT}, s{sNPRE}
    s_cbranch_scc1 {pfx}_pre
    """)
    for i in range(4): g(f"v_mov_b32 v{S(0)+i}, v{vM[i]}")
    g("s_nop 1")
    for i in range(4): g(f"v_permlane32_swap_b32 v{S(0)+i}, v{vM[i]}")
    g("s_nop 1")
    for i in range(4): g(f"v_max_f32 v{vM[i]}, v{vM[i]}, v{S(0)+i}")
    for i in range(4): g(f"v_add_f32 v{vM[i]}, s{sPASS}, v{vM[i]}")
    for i in range(4): g(f"v_and_b32 v{S(0)+i}, 0xffff0000, v{vM[i]}")
    for i in range(4): g(f"v_sub_f32 v{vM[i]}, v{S(0)+i}, v{vM[i]}")
    for i in range(4): g(f"v_cvt_pk_bf16_f32 v{Q2(i)+1}, -v{S(0)+i}, v{vM[i]}")
    for i in range(64): g(f"v_mov_b32 v{O(0)+i}, 0")
    for i in range(16): g(f"v_mov_b32 v{S(3)+i}, 0")
    for i in range(8): g(f"v_mov_b32 v{KVb(3)+4+i}, 0")
    def qk(t, i):
        return [f"v_mfma_f32_32x32x8_bf16 {vr(S(i),16)}, {vr(KVb(t)+12,2)}, {vr(Q2(i),2)}, 0",
                f"v_mfma_f32_32x32x16_bf16 {vr(S(i),16)}, {vr(KVb(t),4)}, {vr(Q1(i),4)}, {vr(S(i),16)}"]
    def pv(t, i):
        return [f"v_smfmac_f32_32x32x32_bf16 {vr(O(i),16)}, {vr(KVb(t)+4,4)}, {vr(S(i),8)}, v{vIDX}",
                f"v_smfmac_f32_32x32x32_bf16 {vr(O(i),16)}, {vr(KVb(t)+8,4)}, {vr(S(i)+8,8)}, v{vIDX}"]
    g("s_waitcnt vmcnt(8)")
    for x in qk(0, 0): g(x)
    g(f"s_mov_b32 s{sIT}, 0\ns_nop 7\ns_nop 3")
    g.lab(f"{pfx}_loop")
    for t in range(4):
        for i in range(4):
            nq = qk(t, i + 1) if i < 3 else qk(t + 1, 0)
            pp = pv(t, i - 1) if i > 0 else pv(t - 1, 3)
            ms = nq + pp
            ld = []
            if i == 1: ld = kload(t + 3)
            if i == 3: g("s_waitcnt vmcnt(8)")
            for q in range(4):
                g(ms[q])
                if ld: g(ld[q])
                if ld and q == 3: g(ld[4])
                for r in range(4 * q, 4 * q + 4): g(f"v_exp_f32 v{S(i)+r}, v{S(i)+r}")
    g(f"""
    s_add_u32 s{sIT}, s{sIT}, 1
    s_cmp_lt_u32 s{sIT}, 8
    s_cbranch_scc1 {pfx}_loop
    s_nop 0
    """)
    for x in pv(3, 3): g(x)
    g("s_nop 7\ns_nop 3")
    for i in range(4):
        g(f"v_add_f32 v{vM[i]}, abs(v{O(i)}), abs(v{O(i)+1})")
        for r in range(2, 10): g(f"v_add_f32 v{vM[i]}, abs(v{O(i)+r}), v{vM[i]}")
        g(f"v_mul_f32 v{vM[i]}, {f32(2.0**-16)}, v{vM[i]}")
        g(f"v_add_f32 v{vM[i]}, abs(v{O(i)+10}), v{vM[i]}")
    g(f"""
    v_add_f32 v{vM[0]}, v{vM[0]}, v{vM[1]}
    v_add_f32 v{vM[2]}, v{vM[2]}, v{vM[3]}
    v_add_f32 v{vM[0]}, v{vM[0]}, v{vM[2]}
    v_mov_b32 v{vT0}, {f32(2.0**109)}
    v_cmp_nlt_f32 vcc, v{vM[0]}, v{vT0}
    s_add_u32 s{sROUND}, s{sROUND}, 2
    s_cmp_lg_u64 vcc, 0
    s_cselect_b32 s{sT1}, 1, 0
    s_add_u32 s{sT2}, s{sROUND}, s{sT1}
    v_mov_b32 v{vT1}, s{sT2}
    """)
    for i in (2, 3):
        for q in range(3):
            g(f"ds_write_b128 v{vXW}, {vr(O(i)+4*q,4)} offset:{((i-2)*3+q)*1024}")
    g(f"""
    s_waitcnt lgkmcnt(0)
    ds_write_b32 v{vFW}, v{vT1}
    """)
    spin(g, f"{pfx}_xw", vT2, vFR, sROUND)
    g(f"""
    v_readfirstlane_b32 s{sT2}, v{vT2}
    """)
    for i in (0, 1):
        for q in range(3):
            g(f"ds_read_b128 {vr(S(i)+4*q,4)}, v{vXR} offset:{(i*3+q)*1024}")
    g(f"""
    s_cmp_lg_u32 s{sT2}, s{sROUND}
    s_cselect_b32 s{sT1}, 1, s{sT1}
    s_cmp_eq_u32 s{sROUND}, 2
    s_cselect_b32 s{sT1}, s{sT1}, 0
    s_waitcnt lgkmcnt(0)
    s_cmp_eq_u32 s{sT1}, 0
    s_cbranch_scc1 {pfx}_fin
    s_mov_b32 s{sNPRE}, 32
    s_mov_b32 s{sPASS}, 0
    s_waitcnt vmcnt(0)
    s_branch {pfx}_restart
    """)
    g.lab(f"{pfx}_fin")
    for i in (0, 1):
        for r in range(11): g(f"v_add_f32 v{O(i)+r}, v{O(i)+r}, v{S(i)+r}")
    for i in (0, 1): g(f"v_rcp_f32 v{O(i)+10}, v{O(i)+10}")
    g("s_nop 0")
    for i in (0, 1): g(f"v_mov_b32 v{O(i)+11}, v{O(i)+10}")
    g("s_nop 1")
    for i in (0, 1): g(f"v_permlane32_swap_b32 v{O(i)+10}, v{O(i)+11}")
    g("s_nop 1")
    for i in (0, 1):
        for r in range(10): g(f"v_mul_f32 v{O(i)+r}, v{O(i)+r}, v{O(i)+10}")
        for r in range(5): g(f"v_cvt_pk_bf16_f32 v{O(i)+r}, v{O(i)+2*r}, v{O(i)+2*r+1}")
    g(f"""
    s_and_b32 s{sT0}, s{sHEAD}, 7
    s_bfe_u32 s{sT1}, s{sT0}, 0x10001
    s_lshl_b32 s{sT1}, s{sT1}, 9
    s_and_b32 s{sT2}, s{sT0}, 1
    s_lshl_b32 s{sT2}, s{sT2}, 2
    s_add_u32 s{sT1}, s{sT1}, s{sT2}
    s_lshr_b32 s{sT2}, s{sT0}, 2
    s_lshl_b32 s{sT2}, s{sT2}, 3
    s_add_u32 s{sT1}, s{sT1}, s{sT2}
    s_lshr_b32 s{sT2}, s{sHEAD}, 3
    s_add_u32 s{sT2}, s{sT2}, 32
    s_lshl_b32 s{sT2}, s{sT2}, 10
    s_add_u32 s{sT1}, s{sT1}, s{sT2}
    s_lshl_b32 s{sT0}, s{sRB}, 2
    s_lshl_b32 s{sT2}, s{sKH}, 1
    s_add_u32 s{sT0}, s{sT0}, s{sT2}
    s_mul_i32 s{sT0}, s{sT0}, {36*1024}
    s_add_u32 s{sT0}, s{sT0}, {OF_OFF}
    s_add_u32 s{sT1}, s{sT1}, s{sT0}
    s_lshl_b32 s{sT2}, s{sHEAD}, 10
    s_add_u32 s{sT0}, s{sT0}, s{sT2}
    v_lshrrev_b32 v{vT0}, 5, v{vLANE}
    v_lshl_add_u32 v{vT0}, v{vT0}, 31, v{vK1}
    buffer_store_dwordx4 {vr(O(0),4)}, v{vK1}, {sr(S_WS,4)}, s{sT0} offen
    buffer_store_dword v{O(0)+4}, v{vT0}, {sr(S_WS,4)}, s{sT1} offen
    s_add_u32 s{sT0}, s{sT0}, {36*1024}
    s_add_u32 s{sT1}, s{sT1}, {36*1024}
    buffer_store_dwordx4 {vr(O(1),4)}, v{vK1}, {sr(S_WS,4)}, s{sT0} offen
    buffer_store_dword v{O(1)+4}, v{vT0}, {sr(S_WS,4)}, s{sT1} offen
    """)

def final(g, name):
    header(g, name, 288)
    S_X, S_WO, S_OUT, S_WS = 8, 12, 16, 24
    sTB, sCBK, sT32, sN32, sM0 = 4, 5, 6, 7, 60
    vT0, vT1, vT2, vT3, vD0, vD1, vL16, vRD, vPF, vXO = 2, 3, 4, 5, 6, 7, 8, 9, 10, 11
    BFR = 112; AF = 24; ACC = 48; PFR = 64; XR = 96
    g(f"""
    v_lshrrev_b32 v2, 6, v0
    v_and_b32 v{vLANE}, 63, v0
    s_mul_hi_u32 s{sTB}, s2, {(2**32 + 8) // 9}
    v_readfirstlane_b32 s{sWAVE}, v2
    s_mul_i32 s{sT0}, s{sTB}, 9
    s_sub_u32 s{sCBK}, s2, s{sT0}
    s_and_b32 s{sT0}, s{sWAVE}, 1
    s_lshr_b32 s{sT1}, s{sWAVE}, 1
    s_lshl_b32 s{sT32}, s{sTB}, 1
    s_add_u32 s{sT32}, s{sT32}, s{sT0}
    s_lshl_b32 s{sN32}, s{sCBK}, 1
    s_add_u32 s{sN32}, s{sN32}, s{sT1}
    v_lshlrev_b32 v{vL16}, 4, v{vLANE}
    v_lshrrev_b32 v{vT0}, 3, v{vLANE}
    v_and_b32 v{vT1}, 7, v{vLANE}
    v_bfe_u32 v{vT2}, v{vLANE}, 4, 1
    v_lshlrev_b32 v{vT2}, 2, v{vT2}
    v_xor_b32 v{vT1}, v{vT1}, v{vT2}
    v_lshlrev_b32 v{vT1}, 4, v{vT1}
    s_lshl_b32 s{sT2}, s{sCBK}, 7
    v_add_u32 v{vT1}, s{sT2}, v{vT1}
    v_mul_u32_u24 v{vD0}, 1152, v{vT0}
    v_add_u32 v{vD0}, v{vD0}, v{vT1}
    v_lshrrev_b32 v{vT2}, 4, v{vLANE}
    v_mul_u32_u24 v{vT2}, 18, v{vT2}
    v_bfe_u32 v{vT3}, v{vLANE}, 3, 1
    v_add3_u32 v{vT2}, v{vT2}, v{vT3}, 16
    v_mul_u32_u24 v{vD1}, 1152, v{vT2}
    v_add_u32 v{vD1}, v{vD1}, v{vT1}
    s_waitcnt lgkmcnt(0)
    """)
    srd(g, S_WO, P_WO, 576 * 576 * 2)
    srd(g, S_WS, P_WS, WS_USED)
    srd(g, S_X, P_X, X_BYTES)
    srd(g, S_OUT, P_OUT, X_BYTES)
    g(f"""
    s_lshl_b32 s{sM0}, s{sWAVE}, 14
    s_mul_i32 s{sT2}, s{sWAVE}, {8*18*1152}
    """)
    for n in range(16):
        g(f"s_add_u32 m0, s{sM0}, {n*1024}")
        g(f"s_add_u32 s{sT3}, s{sT2}, {(18*(n>>1) + 8*(n&1))*1152}")
        g(f"buffer_load_dwordx4 v{vD0}, {sr(S_WO,4)}, s{sT3} offen lds")
    g(f"s_lshl_b32 s{sM0}, s{sWAVE}, 11")
    for n in range(2):
        g(f"s_add_u32 m0, s{sM0}, {65536 + n*1024}")
        g(f"s_add_u32 s{sT3}, s{sT2}, {4*18*n*1152}")
        g(f"buffer_load_dwordx4 v{vD1}, {sr(S_WO,4)}, s{sT3} offen lds")
    g(f"s_mul_i32 s{sT2}, s{sT32}, {36*1024}\ns_add_u32 s{sT2}, s{sT2}, {OF_OFF}")
    for j in range(36):
        g(f"buffer_load_dwordx4 {vr(BFR+4*j,4)}, v{vL16}, {sr(S_WS,4)}, s{sT2} offen offset:{(j%4)*1024}")
        if j % 4 == 3: g(f"s_add_u32 s{sT2}, s{sT2}, 4096")
    g(f"""
    v_lshrrev_b32 v{vT0}, 5, v{vLANE}
    v_bfe_u32 v{vT1}, v{vLANE}, 2, 2
    v_lshl_add_u32 v{vT2}, v{vT0}, 2, v{vT1}
    v_lshlrev_b32 v{vRD}, 7, v{vT2}
    v_lshrrev_b32 v{vT1}, 1, v{vT1}
    s_lshr_b32 s{sT1}, s{sWAVE}, 1
    v_xor_b32 v{vT1}, s{sT1}, v{vT1}
    v_lshl_add_u32 v{vRD}, v{vT1}, 6, v{vRD}
    v_bfe_u32 v{vT2}, v{vLANE}, 4, 1
    v_lshl_add_u32 v{vRD}, v{vT2}, 5, v{vRD}
    v_and_b32 v{vT3}, 3, v{vLANE}
    v_lshl_add_u32 v{vRD}, v{vT3}, 3, v{vRD}
    v_and_b32 v{vT3}, 15, v{vLANE}
    v_lshlrev_b32 v{vPF}, 4, v{vT3}
    v_lshl_add_u32 v{vPF}, v{vT2}, 3, v{vPF}
    v_lshl_add_u32 v{vPF}, v{vT0}, 8, v{vPF}
    v_and_b32 v{vT3}, 31, v{vLANE}
    v_mul_u32_u24 v{vXO}, 1152, v{vT3}
    v_lshl_add_u32 v{vXO}, v{vT0}, 3, v{vXO}
    s_mul_i32 s{sT2}, s{sT32}, 144
    s_lshl_b32 s{sT3}, s{sN32}, 3
    s_add_u32 s{sT2}, s{sT2}, s{sT3}
    s_lshl_b32 s{sT2}, s{sT2}, 8
    s_add_u32 s{sT2}, s{sT2}, {PF_OFF}
    s_mul_i32 s{sT0}, s{sT32}, {32*1152}
    s_lshl_b32 s{sT3}, s{sN32}, 6
    s_add_u32 s{sT0}, s{sT0}, s{sT3}
    s_waitcnt vmcnt(36)
    s_barrier
    """)
    for s in range(4):
        for j in range(4):
            g(f"buffer_load_dwordx2 {vr(PFR+8*s+2*j,2)}, v{vPF}, {sr(S_WS,4)}, s{sT2} offen offset:{512*j}")
        if s < 3: g(f"s_add_u32 s{sT2}, s{sT2}, {64*144*256}")
    for j in range(4):
        g(f"buffer_load_dwordx2 {vr(XR+2*j,2)}, v{vXO}, {sr(S_X,4)}, s{sT0} offen offset:{16*j}")
    g(f"v_add_u32 v{vT0}, 32768, v{vRD}")
    def rd(j):
        b = AF + 4 * (j % 4)
        a, off = (vRD, j * 2048) if j < 16 else (vT0, j * 2048 - 32768)
        return [f"ds_read_b64_tr_b16 {vr(b,2)}, v{a} offset:{off}", f"ds_read_b64_tr_b16 {vr(b+2,2)}, v{a} offset:{off+1024}"]
    for j in range(3):
        for x in rd(j): g(x)
    for j in range(36):
        rem = min(2, 35 - j)
        g(f"s_waitcnt lgkmcnt({2*rem}) vmcnt({20 + 35 - j})")
        g(f"v_mfma_f32_32x32x16_bf16 {vr(ACC,16)}, {vr(AF+4*(j%4),4)}, {vr(BFR+4*j,4)}, {'0' if j == 0 else vr(ACC,16)}")
        if j + 3 < 36:
            for x in rd(j + 3): g(x)
    g("s_waitcnt vmcnt(0)")
    F = BFR; T = BFR + 16; XV = BFR + 32
    for s in range(4):
        for d in range(8):
            p = PFR + 8 * s + d
            if s == 0:
                g(f"v_lshlrev_b32 v{F+2*d}, 16, v{p}\nv_and_b32 v{F+2*d+1}, 0xffff0000, v{p}")
            else:
                g(f"v_lshlrev_b32 v{T+2*d}, 16, v{p}\nv_and_b32 v{T+2*d+1}, 0xffff0000, v{p}")
        if s:
            for r in range(16): g(f"v_add_f32 v{F+r}, v{F+r}, v{T+r}")
    for r in range(16): g(f"v_mul_f32 v{T+r}, {f32(-LOG2E)}, v{F+r}")
    for r in range(16): g(f"v_exp_f32 v{T+r}, v{T+r}")
    for d in range(8): g(f"v_lshlrev_b32 v{XV+2*d}, 16, v{XR+d}\nv_and_b32 v{XV+2*d+1}, 0xffff0000, v{XR+d}")
    for r in range(16): g(f"v_add_f32 v{T+r}, 1.0, v{T+r}")
    for r in range(16): g(f"v_rcp_f32 v{T+r}, v{T+r}")
    for r in range(16): g(f"v_mul_f32 v{F+r}, v{F+r}, v{ACC+r}")
    for r in range(16): g(f"v_fma_f32 v{XV+r}, v{F+r}, v{T+r}, v{XV+r}")
    for d in range(8): g(f"v_cvt_pk_bf16_f32 v{T+d}, v{XV+2*d}, v{XV+2*d+1}")
    for j in range(4):
        g(f"buffer_store_dwordx2 {vr(T+2*j,2)}, v{vXO}, {sr(S_OUT,4)}, s{sT0} offen offset:{16*j}")
    g.lab(f"{name}_end")
    g("s_endpgm")

def kd(name, vgpr):
    return f""".amdhsa_kernel {name}
  .amdhsa_next_free_vgpr {vgpr}
  .amdhsa_next_free_sgpr 96
  .amdhsa_accum_offset {vgpr}
  .amdhsa_group_segment_fixed_size 0
  .amdhsa_kernarg_size 96
  .amdhsa_user_sgpr_count 2
  .amdhsa_user_sgpr_kernarg_segment_ptr 1
  .amdhsa_system_sgpr_workgroup_id_x 1
.end_amdhsa_kernel
"""

def build(extra=0):
    g = G()
    ka, kb, kc = "ph1_kernel", "ph2_kernel", "fin_kernel"
    head = f"""; LayerNorm + MQA attention + SwiGLU FFN, gfx950. Generated by gen/gen.py
; @launch kernel={ka} grid=(256,1,1) block=(256,1,1) lds={LDS_MAIN}
; @launch kernel={kb} grid=(256,1,1) block=(512,1,1) lds={LDS_MAIN}
; @launch kernel={kc} grid=(288,1,1) block=(256,1,1) lds=73728
"""
    for _ in range(extra): head += "; @launch kernel=nop_kernel grid=(256,1,1) block=(256,1,1) lds=0\n"
    g.raw(head + '.amdgcn_target "amdgcn-amd-amdhsa--gfx950"\n.text')
    header(g, ka, 256); decode_main(g); phase1(g, "p1")
    g.lab(ka + "_end"); g("s_endpgm")
    header(g, kb, 256); decode_main(g)
    g(f"""
    v_lshlrev_b32 v2, 2, v0
    v_add_u32 v2, {FLAGS}, v2
    v_mov_b32 v3, 0
    ds_write_b32 v2, v3
    s_waitcnt lgkmcnt(0)
    s_barrier
    s_cmp_ge_u32 s{sWAVE}, 4
    s_cbranch_scc1 {kb}_attn
    """)
    gemm2(g, "g2")
    g("s_endpgm")
    g.lab(kb + "_attn")
    attention(g, "at")
    g.lab(kb + "_end"); g("s_endpgm")
    final(g, kc)
    if extra:
        g.raw(".globl nop_kernel\n.p2align 8\n.type nop_kernel,@function\nnop_kernel:\n    s_endpgm")
    g.raw('.section .rodata,"a"\n.p2align 6')
    for k in (ka, kb, kc): g.raw(kd(k, 256) + ".p2align 6")
    if extra: g.raw(kd("nop_kernel", 8))
    return g.text()

if __name__ == '__main__':
    out = sys.argv[1] if len(sys.argv) > 1 else f"cdna_kernels/{NAME}.s"
    extra = int(sys.argv[2]) if len(sys.argv) > 2 else 0
    t = build(extra)
    open(out, 'w').write(t)
    import hazard
    print('hazards:', hazard.check(t), ' lines:', t.count('\n'))
```

```python
import sys, os, subprocess, struct, ctypes
sys.path.insert(0, 'cdna_kernels')
import numpy as np
from cdna_launch import AsmKernel, DeviceBuffer, with_harness_metadata, pack_ptr_kernargs, _hip, hip_check

HEAD = """; @launch grid=({grid},1,1) block=({block},1,1) lds={lds}
.amdgcn_target "amdgcn-amd-amdhsa--gfx950"
.text
.globl mb_kernel
.p2align 8
.type mb_kernel,@function
mb_kernel:
    s_load_dwordx2 s[4:5], s[0:1], 0
    s_load_dwordx2 s[6:7], s[0:1], 8
    s_waitcnt lgkmcnt(0)
    s_mov_b32 s8, s4
    s_mov_b32 s9, s5
    s_mov_b32 s10, {inbytes}
    s_mov_b32 s11, 0x00020000
    s_mov_b32 s12, s6
    s_mov_b32 s13, s7
    s_mov_b32 s14, {outbytes}
    s_mov_b32 s15, 0x00020000
    v_lshrrev_b32 v1, 6, v0
    s_nop 1
    v_readfirstlane_b32 s16, v1
    v_and_b32 v2, 63, v0             ; lane
    v_lshlrev_b32 v3, 4, v2          ; lane*16
    v_lshlrev_b32 v4, 3, v2          ; lane*8
{init}
    s_cmp_ge_u32 s16, {split}
    s_cbranch_scc1 L_roleB
    s_barrier
    s_memtime s[20:21]
    s_waitcnt lgkmcnt(0)
    s_mov_b32 s18, {iters}
    .p2align 6
L_loopA:
{bodyA}
    s_sub_u32 s18, s18, 1
    s_cmp_lg_u32 s18, 0
    s_cbranch_scc1 L_loopA
    s_nop 15
    s_nop 15
    s_memtime s[22:23]
    s_waitcnt lgkmcnt(0) vmcnt(0)
    s_branch L_done
L_roleB:
    s_barrier
    s_memtime s[20:21]
    s_waitcnt lgkmcnt(0)
    s_mov_b32 s18, {itersB}
    .p2align 6
L_loopB:
{bodyB}
    s_sub_u32 s18, s18, 1
    s_cmp_lg_u32 s18, 0
    s_cbranch_scc1 L_loopB
    s_nop 15
    s_nop 15
    s_memtime s[22:23]
    s_waitcnt lgkmcnt(0) vmcnt(0)
L_done:
    s_sub_u32 s24, s22, s20
    s_mul_i32 s25, s2, {waves}
    s_add_u32 s25, s25, s16
    s_lshl_b32 s25, s25, 2
    v_mov_b32 v5, s24
    v_mov_b32 v6, s25
    v_cmp_eq_u32 vcc, 0, v2
    s_and_saveexec_b64 s[26:27], vcc
    buffer_store_dword v5, v6, s[12:15], 0 offen
    s_waitcnt vmcnt(0)
    s_endpgm
.section .rodata,"a"
.p2align 6
.amdhsa_kernel mb_kernel
  .amdhsa_next_free_vgpr {vgpr}
  .amdhsa_next_free_sgpr 102
  .amdhsa_accum_offset {accum}
  .amdhsa_group_segment_fixed_size 0
  .amdhsa_kernarg_size 16
  .amdhsa_user_sgpr_count 2
  .amdhsa_user_sgpr_kernarg_segment_ptr 1
  .amdhsa_system_sgpr_workgroup_id_x 1
.end_amdhsa_kernel
"""

_cnt = [0]
def run(name, bodyA, bodyB=None, init="", waves=4, split=None, iters=1000, itersB=None, grid=1, lds=0,
        vgpr=256, accum=256, inbuf=None, nA=1, nB=1, reps=3, quiet=False):
    if split is None: split = waves
    if bodyB is None: bodyB = "    s_nop 0"
    if itersB is None: itersB = iters
    if inbuf is None:
        inbuf = np.random.randn(1 << 20).astype(np.float32)
    outbytes = grid * waves * 4
    asm = HEAD.format(grid=grid, block=waves * 64, lds=lds, inbytes=inbuf.nbytes, outbytes=outbytes, init=init,
                      split=split, iters=iters, itersB=itersB, bodyA=bodyA, bodyB=bodyB, waves=waves, vgpr=vgpr, accum=accum)
    _cnt[0] += 1
    base = f"mb_{os.getpid()}_{_cnt[0]}"
    open(base + ".s", "w").write(with_harness_metadata(asm, "mb_kernel", 2))
    r = subprocess.run(["clang", "-x", "assembler", "-target", "amdgcn-amd-amdhsa", "-mcpu=gfx950",
                        base + ".s", "-o", base + ".co"], capture_output=True, text=True)
    if r.returncode != 0:
        print(name, "ASSEMBLY FAILED:", r.stderr[:2000]); return None
    if not os.path.exists('/dev/kfd'):
        print(name, "assembled ok"); return None
    k = AsmKernel(base + ".co", "mb_kernel")
    din = DeviceBuffer.from_numpy(inbuf)
    dout = DeviceBuffer(outbytes)
    ka = pack_ptr_kernargs([din.ptr, dout.ptr])
    best = None
    for _ in range(reps):
        k.launch((grid, 1, 1), (waves * 64, 1, 1), ka, lds)
        hip_check(_hip.hipDeviceSynchronize())
        o = dout.to_numpy(np.uint32, (grid, waves)).astype(np.float64)
        if best is None or o.mean() < best.mean(): best = o
    A = best[:, :split]; B = best[:, split:]
    msg = f"{name:60s} A: {A.mean()/iters/nA:8.2f} cyc/unit (tot {A.mean():.0f})"
    if B.size: msg += f"   B: {B.mean()/itersB/nB:8.2f} cyc/unit (tot {B.mean():.0f})"
    if not quiet: print(msg, flush=True)
    k.unload(); din.free(); dout.free()
    return best

def rep(s, n, **kw):
    return "\n".join(s.format(i=i, **kw) for i in range(n))
```

```python
from mbfw import *
ini = "\n".join(f"    v_mov_b32 v{i}, 1.0" for i in range(8, 250)) + "\n    s_mov_b32 s40, 0xffff0000\n    s_mov_b32 s41, 0x3f803f80"
XN = 112; TP = 80
def cur(grp=1):
    L = []
    n = 128
    for base in range(0, n + 8, grp):
        for r in range(base, base + grp):
            if r < n:
                t = TP + 2 * (r % 16)
                L += [f"    v_dot2_f32_bf16 v{t}, v{XN+r}, v58, v56", f"    v_dot2_f32_bf16 v{t+1}, v{XN+r}, v60, v56"]
        for r in range(base, base + grp):
            q = r - 8
            if 0 <= q < n:
                t = TP + 2 * (q % 16)
                L.append(f"    v_cvt_pk_bf16_f32 v{XN+q}, v{t}, v{t+1}")
    return "\n".join(L)
def plain():
    L = []
    for r in range(128):
        t = TP + 2 * (r % 16)
        L += [f"    v_lshlrev_b32 v{t}, 16, v{XN+r}", f"    v_and_b32 v{t+1}, s40, v{XN+r}", f"    v_fma_f32 v{t}, v{t}, v60, v56", f"    v_fma_f32 v{t+1}, v{t+1}, v60, v56", f"    v_cvt_pk_bf16_f32 v{XN+r}, v{t}, v{t+1}"]
    return "\n".join(L)
def stats():
    return "\n".join(f"    v_dot2_f32_bf16 v{48+r%4}, v{XN+r}, s41, v{48+r%4}\n    v_dot2_f32_bf16 v{52+r%4}, v{XN+r}, v{XN+r}, v{52+r%4}" for r in range(128))
def stats2():
    return "\n".join(f"    v_dot2c_f32_bf16 v{48+r%4}, v{XN+r}, v61\n    v_dot2c_f32_bf16 v{52+r%4}, v{XN+r}, v{XN+r}" for r in range(128))
for g in (1, 2, 4, 8): run(f"center dot2 grp{g} (per reg)", cur(g), init=ini, nA=128, iters=20)
run("center plain (per reg)", plain(), init=ini, nA=128, iters=20)
run("stats dot2 (per reg)", stats(), init=ini, nA=128, iters=20)
run("stats dot2c (per reg)", stats2(), init=ini, nA=128, iters=20)
```
